```python
import torch

def _softmax(x, axis=-1):
    return torch.softmax(x, dim=axis)
def _gelu(x):
    return torch.nn.functional.gelu(x, approximate="tanh")
def _silu(x):
    return torch.nn.functional.silu(x)
def _sigmoid(x):
    return torch.sigmoid(x)
def _layernorm(x, axis=-1, eps=1e-5):
    m = x.mean(dim=axis, keepdim=True)
    v = x.var(dim=axis, keepdim=True, unbiased=False)
    return (x - m) / torch.sqrt(v + eps)
def _scatter_add(tgt, idx, src, axis=0):
    return tgt.clone().index_add_(axis, idx, src)
def _segment_sum(src, seg, n):
    out = torch.zeros((n,) + src.shape[1:], dtype=src.dtype)
    return out.index_add_(0, seg, src)
def _pad(x, pw):
    flat = tuple(v for pair in reversed(pw) for v in pair)
    return torch.nn.functional.pad(x, flat)

kernel_name = 'standalone__gqa_block_cached__sampling'

def setup_inputs():

    _w = (lambda a: (lambda t: t.to(torch.bfloat16) if t.is_floating_point() else t)(torch.as_tensor(a)))
    B, Sq, D = 16, 1, 576
    Hq, Hkv, Sk, Dh = 32, 16, 4096, 128
    assert Hq % Hkv == 0, (Hq, Hkv)
    return {
        "x": _w((lambda *s: torch.randn(*s, dtype=torch.bfloat16) * 0.8)(B, Sq, D)),
        "k_cache": _w((lambda *s: torch.randn(*s, dtype=torch.bfloat16) * 0.8)(B, Hkv, Sk, Dh)),
        "v_cache": _w((lambda *s: torch.randn(*s, dtype=torch.bfloat16) * 0.05)(B, Hkv, Sk, Dh)),
        "wq": _w((lambda *s: torch.randn(*s, dtype=torch.bfloat16) * 0.8)(D, Hq * Dh) * (D ** -0.5)),
        "wo": _w((lambda *s: torch.randn(*s, dtype=torch.bfloat16) * 0.05)(Hq * Dh, D) * ((Hq * Dh) ** -0.5)),
    }

def reference(x, k_cache, v_cache, wq, wo):
    B, Sq, D = x.shape
    Hq, Dh = 32, 128
    Hkv = k_cache.shape[1]
    rep = Hq // Hkv
    q = (lambda x, *d: x.permute(*d))((x @ wq).reshape(B, Sq, Hq, Dh), 0, 2, 1, 3)
    k = (lambda x, n, axis: torch.repeat_interleave(x, n, dim=axis))(k_cache, rep, axis=1)
    v = (lambda x, n, axis: torch.repeat_interleave(x, n, dim=axis))(v_cache, rep, axis=1)
    scores = torch.einsum("bhqd,bhkd->bhqk", q, k) * (Dh ** -0.5)
    p = _softmax(scores, axis=-1)
    o = torch.einsum("bhqk,bhkd->bhqd", p, v)
    return (lambda x, *d: x.permute(*d))(o, 0, 2, 1, 3).reshape(B, Sq, Hq * Dh) @ wo
```

```python
import sys, math, struct

NAME = "standalone__gqa_block_cached__sampling_kernel"
HDR = open("standalone__gqa_block_cached__sampling.s.ref").read().split("; Override launch")[0] if __import__('os').path.exists("standalone__gqa_block_cached__sampling.s.ref") else ""

def f2u(x): return struct.unpack("<I", struct.pack("<f", x))[0]

def gen(D=5, DP=5, stamps=False, kvflags="nt", wflags="", preq=28, prio=3, DW=1):
    L = []
    def A(s): L.append(s)
    def I(s): L.append("  " + s)
    PART = 1 << 20
    LDS_QP, LDS_OP, LDS_ML, LDS_OB, LDS_YP = 0, 8192, 12288, 14336, 16384
    LDS_TOTAL = 16384 + 32768
    A(HDR.rstrip("\n"))
    A(f"; @launch grid=(256,1,1) block=(768,1,1) lds={LDS_TOTAL}")
    A('.amdgcn_target "amdgcn-amd-amdhsa--gfx950"')
    A(".text")
    A(f".globl {NAME}\n.p2align 8\n.type {NAME},@function\n{NAME}:")
    def stamp(k):
        if stamps: I(f"s_memrealtime s[{60+2*k}:{61+2*k}]")
    I("s_cmp_ge_u32 s2, 256")
    I("s_cbranch_scc1 L_end")
    I("s_load_dwordx16 s[4:19], s[0:1], 0")
    stamp(0)
    I("v_lshrrev_b32 v1, 6, v0")
    I("v_and_b32 v0, 63, v0")
    I("s_and_b32 s20, s2, 7")
    I("v_readfirstlane_b32 s3, v1")
    I("s_lshl_b32 s20, s20, 1")
    I("s_bfe_u32 s21, s2, 0x10003")
    I("s_add_u32 s20, s20, s21             ; hkv")
    I("s_lshr_b32 s21, s2, 4               ; b")
    I("s_lshl_b32 s22, s21, 4")
    I("s_add_u32 s22, s22, s20")
    I("s_mov_b32 s27, 0x20000")
    I("s_mov_b32 s31, 0x20000")
    I("s_cmp_ge_u32 s3, 4")
    I("s_cbranch_scc1 L_helper")

    vK, vV = 1, 2
    vM, vL, vMC, vT, vT2, vP = 3, 4, 5, 6, 7, 36
    vPP = 37
    QB, DB, S, O, MK = 8, 12, 20, 28, 32
    RING = 40
    def slot(i): return f"v[{RING+4*i}:{RING+4*i+3}]"
    def r4(b): return f"v[{b}:{b+3}]"
    if prio: I(f"s_setprio {prio}")
    I("v_lshlrev_b32 v1, 13, v1            ; wave*8192")
    I(f"v_lshl_add_u32 v{vV}, v0, 4, v1")
    I("v_bfe_u32 v3, v0, 2, 2")
    I(f"v_lshl_add_u32 v{vK}, v3, 8, v1")
    I("v_lshrrev_b32 v3, 4, v0")
    I(f"v_lshl_add_u32 v{vK}, v3, 6, v{vK}")
    I("v_and_b32 v3, 3, v0")
    I(f"v_lshl_add_u32 v{vK}, v3, 4, v{vK}")
    I("s_lshl_b32 s23, s22, 20")
    I("s_mov_b32 s26, 0x100000")
    I("s_mov_b32 s30, 0x100000")
    I("s_mov_b32 s36, 0")
    I("s_mov_b32 s37, 4096")
    I("s_mov_b32 s38, 32768")
    I("s_mov_b32 s39, 36864")
    I("s_waitcnt lgkmcnt(0)")
    I("s_add_u32 s24, s6, s23")
    I("s_addc_u32 s25, s7, 0")
    I("s_add_u32 s28, s8, s23")
    I("s_addc_u32 s29, s9, 0")
    def load(i):
        u, isV, j = i // 16, (i // 8) & 1, i % 8
        srd = "s[28:31]" if isV else "s[24:27]"
        va = vV if isV else vK
        I(f"buffer_load_dwordx4 {slot(i)}, v{va}, {srd}, s{36+2*u+j//4} offen offset:{(j%4)*1024} {kvflags}")
    def pload(i):
        if i >= DP: I(f"s_waitcnt vmcnt({DP-1})")
        load(i)
    for i in range(DP): pload(i)
    I("v_and_b32 v3, 1, v0")
    I("v_cmp_eq_u32 vcc, 1, v3")
    I("v_mov_b32 v4, 0xffff")
    I("v_mov_b32 v5, 0xffff0000")
    I("v_bfe_u32 v3, v0, 1, 2")
    I("v_cndmask_b32 v4, v4, v5, vcc")
    for r in range(4):
        I(f"v_cmp_eq_u32 vcc, {r}, v3")
        I("s_nop 1")
        I(f"v_cndmask_b32 v{MK+r}, 0, v4, vcc")
    I("v_bfe_u32 v3, v0, 3, 1")
    I("v_lshlrev_b32 v38, 9, v3")
    I("v_lshrrev_b32 v3, 4, v0")
    I("v_lshl_add_u32 v38, v3, 7, v38")
    I("v_and_b32 v3, 3, v0")
    I("v_lshl_add_u32 v38, v3, 5, v38")
    I(f"v_mov_b32 v{vM}, 0xff7fffff")
    I(f"v_mov_b32 v{vL}, 0")
    for r in range(4): I(f"v_mov_b32 v{O+r}, 0")
    I(f"s_mov_b32 s40, {f2u(math.log2(math.e) / math.sqrt(128.0)):#x}")
    I("s_mov_b32 s41, 0")
    for i in range(DP, preq): pload(i)
    stamp(1)
    I("s_barrier")
    stamp(2)
    rest = list(range(preq, 32))
    I(f"ds_read_b128 {r4(DB)}, v38 offset:{LDS_QP}")
    I(f"ds_read_b128 {r4(DB+4)}, v38 offset:{LDS_QP+16}")
    for j in range(1, 8):
        I(f"ds_read_b128 {r4(S)}, v38 offset:{LDS_QP+j*1024}")
        I(f"ds_read_b128 {r4(S+4)}, v38 offset:{LDS_QP+j*1024+16}")
        if rest and j % 2 == 1: pload(rest.pop(0))
        I("s_waitcnt lgkmcnt(0)")
        for e in range(8): I(f"v_add_f32 v{DB+e}, v{DB+e}, v{S+e}")
    for i in rest: pload(i)
    for r in range(4): I(f"v_cvt_pk_bf16_f32 v{QB+r}, v{DB+2*r}, v{DB+2*r+1}")
    I(f"s_waitcnt vmcnt({D-1})")
    stamp(3)
    A("L_loop:")
    for r in range(4): I(f"s_add_u32 s{36+r}, s{36+r}, 65536")
    I("s_cmp_eq_u32 s41, 15")
    I("s_cselect_b32 s26, 0, s26")
    I("s_cselect_b32 s30, 0, s30")
    def dpp(j):
        d = DB + 4 * (j & 1)
        I(f"v_mov_b32_dpp v{S+j}, v{d} quad_perm:[0,0,0,0] row_mask:0xf bank_mask:0xf")
        for c in range(1, 4):
            I("s_nop 1")
            I(f"v_add_f32_dpp v{S+j}, v{d+c}, v{S+j} quad_perm:[{c},{c},{c},{c}] row_mask:0xf bank_mask:0xf")
    def issue(i):
        I(f"s_waitcnt vmcnt({D-1})")
        load(i)
    for u in range(2):
        for j in range(8):
            i = 16 * u + j
            I(f"v_mfma_f32_16x16x32_bf16 {r4(DB+4*(j&1))}, {slot(i)}, {r4(QB)}, 0")
            if j > 0:
                if j == 1: I("s_nop 4")
                dpp(j - 1)
            issue(i)
        dpp(7)
        I(f"v_max3_f32 v{vT}, v{S}, v{S+1}, v{S+2}")
        I(f"v_max3_f32 v{vT}, v{vT}, v{S+3}, v{S+4}")
        I(f"v_max3_f32 v{vT}, v{vT}, v{S+5}, v{S+6}")
        I(f"v_max3_f32 v{vT}, v{vT}, v{S+7}, v{vM}")
        I(f"v_mov_b32 v{vT2}, v{vT}")
        I("s_nop 1")
        I(f"v_permlane16_swap_b32 v{vT}, v{vT2}")
        I("s_nop 1")
        I(f"v_max_f32 v{vT}, v{vT}, v{vT2}")
        I(f"v_mov_b32 v{vT2}, v{vT}")
        I("s_nop 1")
        I(f"v_permlane32_swap_b32 v{vT}, v{vT2}")
        I("s_nop 1")
        I(f"v_max_f32 v{vT}, v{vT}, v{vT2}")
        I(f"v_sub_f32 v{vT2}, v{vM}, v{vT}")
        I(f"v_mul_f32 v{vMC}, s40, v{vT}")
        I(f"v_mul_f32 v{vT2}, s40, v{vT2}")
        I(f"v_fma_f32 v{vP}, v{S}, s40, -v{vMC}")
        I(f"v_exp_f32 v{vT2}, v{vT2}              ; alpha")
        I(f"v_exp_f32 v{vP}, v{vP}")
        I(f"v_mov_b32 v{vM}, v{vT}")
        I(f"v_fma_f32 v{vL}, v{vL}, v{vT2}, v{vP}")
        I(f"v_cvt_pk_bf16_f32 v{vPP}, v{vP}, v{vP}")
        for r in range(4): I(f"v_mul_f32 v{O+r}, v{O+r}, v{vT2}")
        for j in range(8):
            i = 16 * u + 8 + j
            b = DB + 4 * (j & 1)
            for r in range(4): I(f"v_and_b32 v{b+r}, v{MK+r}, v{vPP}")
            if j < 7:
                I(f"v_fma_f32 v{vP}, v{S+j+1}, s40, -v{vMC}")
                I(f"v_exp_f32 v{vP}, v{vP}")
            else:
                I("s_nop 1")
            I(f"v_mfma_f32_16x16x32_bf16 {r4(O)}, {slot(i)}, {r4(b)}, {r4(O)}")
            if j < 7:
                I(f"v_add_f32 v{vL}, v{vL}, v{vP}")
                I(f"v_cvt_pk_bf16_f32 v{vPP}, v{vP}, v{vP}")
            issue(i)
    I("s_add_u32 s41, s41, 1")
    I("s_cmp_lt_u32 s41, 16")
    I("s_cbranch_scc1 L_loop")
    stamp(4)
    I(f"v_mov_b32 v{vT2}, v{vL}")
    I(f"v_lshlrev_b32 v1, 4, v0")
    I(f"s_lshl_b32 s42, s3, 10")
    I(f"v_permlane16_swap_b32 v{vL}, v{vT2}")
    I("s_nop 1")
    I(f"v_add_f32 v{vL}, v{vL}, v{vT2}")
    I(f"v_add_u32 v2, s42, v1")
    I(f"v_mov_b32 v{vT2}, v{vL}")
    I(f"v_lshrrev_b32 v38, 1, v2")
    I("s_nop 0")
    I(f"v_permlane32_swap_b32 v{vL}, v{vT2}")
    I("s_nop 1")
    I(f"v_add_f32 v5, v{vL}, v{vT2}")
    I(f"v_mov_b32 v4, v{vM}                  ; v[4:5] = (m, l)")
    I(f"ds_write_b128 v2, {r4(O)} offset:{LDS_OP}")
    I(f"ds_write_b64 v38, v[4:5] offset:{LDS_ML}")
    I("s_waitcnt lgkmcnt(0)")
    I("s_barrier")
    I("s_cmp_eq_u32 s3, 3")
    I("s_cbranch_scc1 L_done")
    I("s_cmp_lg_u32 s3, 0")
    I("s_cbranch_scc1 L_s_wait3")
    for w in range(1, 4): I(f"ds_read_b64 v[{4+2*w}:{5+2*w}], v38 offset:{LDS_ML+512*w}")
    for w in range(1, 4): I(f"ds_read_b128 {r4(40+4*w)}, v2 offset:{LDS_OP+1024*w}")
    I("s_waitcnt lgkmcnt(3)")
    I("v_max3_f32 v12, v4, v6, v8")
    I("v_max_f32 v12, v12, v10")
    for w in range(4): I(f"v_sub_f32 v{4+2*w}, v{4+2*w}, v12")
    for w in range(4): I(f"v_mul_f32 v{4+2*w}, s40, v{4+2*w}")
    for w in range(4): I(f"v_exp_f32 v{4+2*w}, v{4+2*w}")
    I("s_nop 0")
    I("v_mul_f32 v12, v4, v5")
    for w in range(1, 4): I(f"v_fma_f32 v12, v{4+2*w}, v{5+2*w}, v12")
    I("v_rcp_f32 v13, v12")
    for r in range(4): I(f"v_mul_f32 v{O+r}, v{O+r}, v4")
    I("v_fma_f32 v14, -v12, v13, 1.0")
    I("v_fma_f32 v13, v14, v13, v13")
    I("s_waitcnt lgkmcnt(0)")
    for w in range(1, 4):
        for r in range(4): I(f"v_fma_f32 v{O+r}, v{40+4*w+r}, v{4+2*w}, v{O+r}")
    for r in range(4): I(f"v_mul_f32 v{O+r}, v{O+r}, v13")
    for r in range(4): I(f"v_cvt_pk_bf16_f32 v{O+r}, v{O+r}, v{O+r}")
    I(f"ds_write_b128 v2, {r4(O)} offset:{LDS_OB}")
    I("s_waitcnt lgkmcnt(0)")
    A("L_s_wait3:")
    I("s_barrier                           ; #3 o ready")
    I("s_lshl_b32 s42, s3, 8")
    I("v_lshl_add_u32 v3, v0, 2, s42         ; c0")
    I("v_lshrrev_b32 v4, 5, v3")
    I("v_lshl_add_u32 v4, v4, 3, v3")
    I("v_lshrrev_b32 v5, 7, v3")
    I("v_lshl_add_u32 v4, v5, 4, v4")
    I("v_lshlrev_b32 v4, 2, v4")
    I("s_cmp_eq_u32 s3, 2")
    I("s_cbranch_scc0 L_s_a")
    I("v_and_b32 v5, 31, v0")
    I("v_lshlrev_b32 v4, 4, v5")
    I(f"v_add_u32 v4, {704*4}, v4             ; 704 + rb*64 + 4*(l&15)")
    A("L_s_a:")
    I("v_lshlrev_b32 v6, 2, v3")
    I("v_lshlrev_b32 v7, 1, v3")
    I(f"s_mul_i32 s43, s21, {16*2304}")
    I(f"s_add_u32 s43, s43, {PART}")
    I("s_add_u32 s24, s18, s43")
    I("s_addc_u32 s25, s19, 0")
    I(f"s_mov_b32 s26, {16*2304}")
    I("s_mul_i32 s44, s20, 2304")
    I("s_mul_i32 s45, s21, 1152")
    I("s_add_u32 s28, s14, s45")
    I("s_addc_u32 s29, s15, 0")
    I("s_mov_b32 s30, 1152")
    I("s_mul_i32 s46, s21, 3")
    I("s_add_u32 s46, s46, s3")
    I("s_lshl_b32 s46, s46, 2")
    I("v_mov_b32 v8, s46")
    I("v_mov_b32 v9, 1")
    I("s_waitcnt vmcnt(0)")
    I("s_barrier")
    stamp(5)
    for j in range(8): I(f"ds_read_b128 {r4(40+4*j)}, v4 offset:{LDS_YP+4096*j}")
    for j in range(1, 8):
        I(f"s_waitcnt lgkmcnt({7-j})")
        for r in range(4): I(f"v_add_f32 v{40+r}, v{40+r}, v{40+4*j+r}")
    I("s_cmp_eq_u32 s3, 2")
    I("s_cbranch_scc0 L_s_b")
    for r in range(4): I(f"v_mov_b32 v{44+r}, v{40+r}")
    I("s_nop 1")
    for r in range(4): I(f"v_permlane16_swap_b32 v{40+r}, v{44+r}")
    I("s_nop 1")
    for r in range(4): I(f"v_add_f32 v{40+r}, v{40+r}, v{44+r}")
    I("s_mov_b64 exec, 0xffff")
    A("L_s_b:")
    I(f"buffer_store_dwordx4 {r4(40)}, v6, s[24:27], s44 offen sc1")
    I("s_mov_b64 s[48:49], exec")
    I("s_waitcnt vmcnt(0)")
    stamp(6)
    I("s_mov_b64 exec, 1")
    I("global_atomic_add v10, v8, v9, s[16:17] sc0")
    I("s_waitcnt vmcnt(0)")
    I("v_readfirstlane_b32 s47, v10")
    I("s_mov_b64 exec, s[48:49]")
    I("s_cmp_eq_u32 s47, 15")
    I("s_cbranch_scc0 L_done")
    I("s_mov_b32 s44, 0")
    for h in range(16):
        I(f"buffer_load_dwordx4 {r4(40+4*h)}, v6, s[24:27], s44 offen sc1")
        if h < 15: I("s_add_u32 s44, s44, 2304")
    for h in range(1, 16):
        I(f"s_waitcnt vmcnt({15-h})")
        for r in range(4): I(f"v_add_f32 v{40+r}, v{40+r}, v{40+4*h+r}")
    I("v_cvt_pk_bf16_f32 v40, v40, v41")
    I("v_cvt_pk_bf16_f32 v41, v42, v43")
    I("buffer_store_dwordx2 v[40:41], v7, s[28:31], 0 offen")
    I("s_branch L_done")

    A("L_helper:")
    W = 24
    def ws_(i): return f"v[{W+4*i}:{W+4*i+3}]"
    X, HB, HA = 4, 16, 20
    I("s_sub_u32 s23, s3, 4                ; j")
    I("v_lshrrev_b32 v3, 4, v0             ; g")
    I("v_mul_u32_u24 v2, 36, v3")
    I(f"v_mul_u32_u24 v1, {18*8192}, v3")
    I("v_and_b32 v13, 15, v0")
    I("v_lshl_add_u32 v1, v13, 4, v1")
    I("s_mul_i32 s36, s21, 1152")
    I("s_mul_i32 s37, s23, 144")
    I("s_add_u32 s36, s36, s37")
    I(f"s_mul_i32 s37, s23, {72*8192}")
    I("s_lshl_b32 s38, s20, 9")
    I("s_add_u32 s37, s37, s38")
    I("s_mov_b32 s30, 144")
    I(f"s_sub_u32 s26, {576*8192}, s37")
    I("s_mov_b32 s39, 0")
    I("s_waitcnt lgkmcnt(0)")
    I("s_add_u32 s28, s4, s36")
    I("s_addc_u32 s29, s5, 0")
    I("s_add_u32 s24, s10, s37")
    I("s_addc_u32 s25, s11, 0")
    I(f"buffer_load_dwordx4 v[{X}:{X+3}], v2, s[28:31], 0 offen")
    I(f"buffer_load_dwordx4 v[{X+4}:{X+7}], v2, s[28:31], 0 offen offset:16")
    I(f"buffer_load_dword v{X+8}, v2, s[28:31], 0 offen offset:32")
    for rq in range(18):
        for h in range(2):
            I(f"buffer_load_dwordx4 {ws_(2*rq+h)}, v1, s[24:27], s39 offen offset:{h*256} {wflags}")
        if rq < 17: I("s_add_u32 s39, s39, 8192")
    I("v_and_b32 v3, 1, v0")
    I("v_cmp_eq_u32 vcc, 1, v3")
    I("v_mov_b32 v13, 0x0c0c0100")
    I("v_mov_b32 v14, 0x01000c0c")
    I("v_mov_b32 v15, 0x0c0c0302")
    I("v_cndmask_b32 v13, v13, v14, vcc")
    I("v_mov_b32 v14, 0x03020c0c")
    I("v_bfe_u32 v3, v0, 1, 3")
    I("v_cndmask_b32 v14, v15, v14, vcc")
    for k in range(8): I(f"v_cmp_eq_u32 s[{42+2*k}:{43+2*k}], {k}, v3")
    for r in range(4): I(f"v_mov_b32 v{HA+r}, 0")
    I("s_waitcnt vmcnt(36)")
    for rq in range(18):
        I(f"v_perm_b32 v15, v{X+rq//2}, v{X+rq//2}, v{13+(rq&1)}")
        for h in range(2):
            for r in range(4): I(f"v_cndmask_b32 v{HB+r}, 0, v15, s[{42+2*(4*h+r)}:{43+2*(4*h+r)}]")
            I(f"s_waitcnt vmcnt({35-(2*rq+h)})")
            I("s_nop 0")
            I(f"v_mfma_f32_16x16x32_bf16 {r4(HA)}, {ws_(2*rq+h)}, {r4(HB)}, {r4(HA)}")
    I("v_bfe_u32 v3, v0, 3, 1")
    I("v_lshlrev_b32 v2, 9, v3")
    I("v_lshrrev_b32 v3, 4, v0")
    I("v_lshl_add_u32 v2, v3, 7, v2")
    I("v_and_b32 v3, 7, v0")
    I("v_lshl_add_u32 v2, v3, 2, v2")
    I("s_lshl_b32 s36, s23, 10")
    I("v_add_u32 v2, s36, v2")
    I("s_nop 1")
    for r in range(4): I(f"ds_write_b32 v2, v{HA+r} offset:{LDS_QP+32*r}")
    I("s_waitcnt lgkmcnt(0)")
    stamp(1)
    I("s_barrier                           ; #1")
    stamp(2)
    I("s_lshl_b32 s36, s20, 8")
    I("s_lshl_b32 s37, s23, 5")
    I("s_add_u32 s36, s36, s37")
    I("s_mul_i32 s36, s36, 1152")
    I("s_add_u32 s24, s12, s36")
    I("s_addc_u32 s25, s13, 0")
    I(f"s_mov_b32 s26, {32*1152}")
    I("v_lshrrev_b32 v3, 4, v0")
    I("v_mul_u32_u24 v1, 1152, v3")
    I("v_bfe_u32 v3, v0, 3, 1")
    I("v_mul_u32_u24 v2, 4608, v3")
    I("v_add_u32 v2, v2, v1")
    I("v_and_b32 v3, 7, v0")
    I("v_lshl_add_u32 v2, v3, 4, v2")
    I("v_and_b32 v3, 15, v0")
    I("v_lshl_add_u32 v1, v3, 4, v1")
    I("s_mov_b32 s39, 0")
    n = 0
    for r in range(4):
        I(f"buffer_load_dwordx4 {ws_(r)}, v2, s[24:27], s39 offen offset:1024 {wflags}")
        I(f"s_add_u32 s39, s39, 9216")
        I(f"s_waitcnt vmcnt({DW-1})")
    I("s_mov_b32 s39, 0")
    for t in range(8):
        for blk in range(4):
            I(f"buffer_load_dwordx4 {ws_(4+4*t+blk)}, v1, s[24:27], s39 offen offset:{blk*256} {wflags}")
            I(f"s_waitcnt vmcnt({DW-1})")
        if t < 7: I("s_add_u32 s39, s39, 4608")
    HM = 12
    I("v_and_b32 v3, 1, v0")
    I("v_cmp_eq_u32 vcc, 1, v3")
    I("v_mov_b32 v4, 0xffff")
    I("v_mov_b32 v5, 0xffff0000")
    I("v_bfe_u32 v3, v0, 1, 2")
    I("v_cndmask_b32 v4, v4, v5, vcc")
    for r in range(4):
        I(f"v_cmp_eq_u32 vcc, {r}, v3")
        I("s_nop 1")
        I(f"v_cndmask_b32 v{HM+r}, 0, v4, vcc")
    I("s_and_b32 s36, s23, 3")
    I("s_lshl_b32 s36, s36, 8")
    I("s_lshr_b32 s37, s23, 2")
    I("s_lshl_b32 s37, s37, 7")
    I("s_add_u32 s36, s36, s37")
    I("v_lshrrev_b32 v3, 4, v0")
    I("v_lshl_add_u32 v1, v3, 4, s36")
    I("v_mul_u32_u24 v2, 160, v3")
    I("v_bfe_u32 v4, v0, 3, 1")
    I("v_cmp_eq_u32 s[42:43], 1, v4")
    I("v_mul_u32_u24 v5, 704, v4")
    I("v_add_u32 v2, v2, v5")
    I("v_and_b32 v5, 7, v0")
    I("v_lshl_add_u32 v2, v5, 2, v2")
    I("s_lshl_b32 s36, s23, 12")
    I("v_add_u32 v2, s36, v2")
    I("v_lshrrev_b32 v6, 5, v0")
    I("v_cmp_eq_u32 vcc, v6, v4")
    I("v_lshlrev_b32 v3, 7, v3               ; g*32 dwords")
    I("v_lshl_add_u32 v3, v5, 2, v3")
    I(f"v_add_u32 v6, {832*4}, v3")
    I(f"v_add_u32 v3, {704*4}, v3")
    I("v_cndmask_b32 v3, v6, v3, vcc")
    I("v_add_u32 v3, s36, v3")
    I("s_waitcnt vmcnt(0)")
    stamp(3)
    I("s_barrier                           ; #2")
    I("s_barrier                           ; #3")
    stamp(4)
    I(f"ds_read_b128 v[4:7], v1 offset:{LDS_OB}")
    I(f"ds_read_b128 v[8:11], v1 offset:{LDS_OB+64}")
    I("s_waitcnt lgkmcnt(0)")
    for r in range(4):
        I(f"v_cndmask_b32 v0, v{4+r}, v{8+r}, s[42:43]")
        for k in range(4): I(f"v_and_b32 v{HB+k}, v{HM+k}, v0")
        I("s_nop 1")
        c = "0" if r == 0 else r4(HA)
        I(f"v_mfma_f32_16x16x32_bf16 {r4(HA)}, {ws_(r)}, {r4(HB)}, {c}")
    for t in range(8):
        src = 4 + 4 * (t & 1) + (t >> 1)
        for k in range(4): I(f"v_and_b32 v{HB+k}, v{HM+k}, v{src}")
        I("s_nop 1")
        for blk in range(4):
            c = "0" if t == 0 else ws_(blk)
            I(f"v_mfma_f32_16x16x32_bf16 {ws_(blk)}, {ws_(4+4*t+blk)}, {r4(HB)}, {c}")
    for r in range(4): I(f"ds_write_b32 v3, v{HA+r} offset:{LDS_YP+32*r}")
    I("s_nop 3")
    for a in range(2):
        for r in range(4):
            I(f"v_cndmask_b32 v{4+4*a+r}, v{W+8*a+r}, v{W+8*a+4+r}, s[42:43]")
    for a in range(2):
        for r in range(4):
            I(f"ds_write_b32 v2, v{4+4*a+r} offset:{LDS_YP+a*352*4+32*r}")
    I("s_waitcnt lgkmcnt(0)")
    stamp(5)
    I("s_barrier                           ; #4")
    A("L_done:")
    if stamps:
        stamp(7)
        I("s_getreg_b32 s58, hwreg(HW_REG_XCC_ID)")
        I("s_mov_b64 exec, 1")
        I("s_mul_i32 s59, s2, 12")
        I("s_add_u32 s59, s59, s3")
        I("s_lshl_b32 s59, s59, 6")
        I("s_waitcnt lgkmcnt(0)")
        I("v_mov_b32 v0, s59")
        for k in range(8): I(f"v_mov_b32 v{4+k}, s{60+2*k}")
        I("v_mov_b32 v12, s58")
        I("global_store_dwordx4 v0, v[4:7], s[18:19]")
        I("global_store_dwordx4 v0, v[8:11], s[18:19] offset:16")
        I("global_store_dword v0, v12, s[18:19] offset:32")
    A("L_end:")
    I("s_endpgm")
    A('.section .rodata,"a"\n.p2align 6')
    A(f".amdhsa_kernel {NAME}")
    A("  .amdhsa_next_free_vgpr 168")
    A("  .amdhsa_next_free_sgpr 80")
    A("  .amdhsa_accum_offset 168")
    A("  .amdhsa_group_segment_fixed_size 0\n  .amdhsa_kernarg_size 64\n  .amdhsa_user_sgpr_count 2\n  .amdhsa_user_sgpr_kernarg_segment_ptr 1\n  .amdhsa_system_sgpr_workgroup_id_x 1")
    A(".end_amdhsa_kernel")
    return "\n".join(L) + "\n"

if __name__ == "__main__":
    open("v1.s", "w").write(gen())
    open("v1_st.s", "w").write(gen(stamps=True))
```
